```python
import torch

def _softmax(x, axis=-1):
    return torch.softmax(x, dim=axis)
def _gelu(x):
    return torch.nn.functional.gelu(x, approximate="tanh")
def _silu(x):
    return torch.nn.functional.silu(x)
def _sigmoid(x):
    return torch.sigmoid(x)
def _layernorm(x, axis=-1, eps=1e-5):
    m = x.mean(dim=axis, keepdim=True)
    v = x.var(dim=axis, keepdim=True, unbiased=False)
    return (x - m) / torch.sqrt(v + eps)
def _scatter_add(tgt, idx, src, axis=0):
    return tgt.clone().index_add_(axis, idx, src)
def _segment_sum(src, seg, n):
    out = torch.zeros((n,) + src.shape[1:], dtype=src.dtype)
    return out.index_add_(0, seg, src)
def _pad(x, pw):
    flat = tuple(v for pair in reversed(pw) for v in pair)
    return torch.nn.functional.pad(x, flat)

kernel_name = 'interleave_layers__spectral_gfnet__dense_activation_silu__prompt'

def setup_inputs():

    _w = (lambda a: (lambda t: t.to(torch.bfloat16) if t.is_floating_point() else t)(torch.as_tensor(a)))
    def _A_setup():
        B, S, D = 1, 2048, 640
        Df = D // 2 + 1
        return {
            "x": _w((lambda *s: torch.randn(*s, dtype=torch.bfloat16) * 0.05)(B, S, D)),
            "w_r": _w((lambda *s: torch.randn(*s, dtype=torch.bfloat16) * 0.4)(S, Df) * 0.02),
            "w_i": _w((lambda *s: torch.randn(*s, dtype=torch.bfloat16) * 0.4)(S, Df) * 0.02),
        }
    _A_in = _A_setup()

    def _B_setup():
        B, S, D, F = 1, 2048, 640, 1536
        return {
            "x": _w((lambda *s: torch.randn(*s, dtype=torch.bfloat16) * 0.05)(B, S, D)),
            "w1": _w((lambda *s: torch.randn(*s, dtype=torch.bfloat16) * 0.4)(D, F) * (D ** -0.5)),
            "w2": _w((lambda *s: torch.randn(*s, dtype=torch.bfloat16) * 0.1)(F, D) * (F ** -0.5)),
        }
    _B_in = _B_setup()

    return {
        "A_x": _A_in["x"],
        "A_w_r": _A_in["w_r"],
        "A_w_i": _A_in["w_i"],
        "B_x": _B_in["x"],
        "B_w1": _B_in["w1"],
        "B_w2": _B_in["w2"],
    }

def reference(A_x, A_w_r, A_w_i, B_x, B_w1, B_w2):
    def _A_ref(x, w_r, w_i):
        B, S, D = x.shape
        X = (lambda x, axes=(-2,-1): torch.fft.rfft2(x.float(), dim=axes))(x, axes=(-2, -1))
        W = w_r + 1j * w_i
        X = X * W
        y = (lambda x, s, axes=(-2,-1): torch.fft.irfft2(x, s=s, dim=axes).to(torch.bfloat16))(X, (S, D), axes=(-2, -1))
        return y

    def _B_ref(x, w1, w2):
        h = torch.einsum("bsd,df->bsf", x, w1)
        h = _silu(h)
        out = torch.einsum("bsf,fd->bsd", h, w2)
        return out

    x = A_x
    x = x + _A_ref(_layernorm(x, axis=-1), A_w_r, A_w_i)
    x = x + _B_ref(_layernorm(x, axis=-1), B_w1, B_w2)
    x = x + _A_ref(_layernorm(x, axis=-1), A_w_r, A_w_i)
    x = x + _B_ref(_layernorm(x, axis=-1), B_w1, B_w2)
    return x
```

```python
import re

REG_RE = re.compile(r'\b([vas])\[(\d+):(\d+)\]|\b([vas])(\d+)\b|\b(vcc|exec|m0|scc)\b')

def regs_of(txt):
    out = []
    for m in REG_RE.finditer(txt):
        if m.group(1):
            out += [(m.group(1), i) for i in range(int(m.group(2)), int(m.group(3)) + 1)]
        elif m.group(4):
            out.append((m.group(4), int(m.group(5))))
        else:
            out.append((m.group(6), 0))
    return out

TRANS = ('v_exp_f32', 'v_log_f32', 'v_rcp_f32', 'v_rsq_f32', 'v_sqrt_f32', 'v_sin_f32', 'v_cos_f32', 'v_rcp_iflag_f32')

class Ins:
    def __init__(self, text):
        self.text = text
        t = text.split(';')[0].strip()
        self.op = t.split()[0]
        rest = t[len(self.op):].strip()
        ops = [o.strip() for o in rest.split(',')] if rest else []
        self.ops = ops
        op = self.op
        self.kind = 'other'
        self.dst = []; self.src = []
        self.nstates = 1
        if op == 's_nop':
            self.kind = 'nop'; self.nstates = int(ops[0], 0) + 1; return
        if op.startswith('v_mfma'):
            self.kind = 'mfma'
            self.dst = regs_of(ops[0]); self.srcA = regs_of(ops[1]); self.srcB = regs_of(ops[2]); self.srcC = regs_of(ops[3])
            self.src = self.srcA + self.srcB + self.srcC
            self.passes = 4 if '16x16x32' in op else 8
            return
        if op.startswith('v_'):
            self.kind = 'valu'
            if op.startswith('v_cmp'):
                self.dst = regs_of(ops[0]); self.src = regs_of(','.join(ops[1:]))
            elif op.startswith('v_swap') or op.startswith('v_permlane'):
                self.dst = regs_of(ops[0]) + regs_of(ops[1]); self.src = self.dst[:]
            elif op in ('v_add_co_u32', 'v_addc_co_u32', 'v_sub_co_u32'):
                self.dst = regs_of(ops[0]) + regs_of(ops[1]); self.src = regs_of(','.join(ops[2:]))
            else:
                self.dst = regs_of(ops[0]); self.src = regs_of(','.join(ops[1:]))
                if op.startswith('v_fmac') or op.startswith('v_fma_mix') or op.startswith('v_writelane') or op.startswith('v_pk_fmac'):
                    self.src += self.dst
                if op.startswith('v_cndmask') and len(ops) == 3: self.src.append(('vcc', 0))
            self.trans = op.replace('_e32', '').replace('_e64', '') in TRANS
            self.dpp = any(k in rest for k in ('quad_perm', 'row_shr', 'row_shl', 'row_ror', 'row_mirror', 'row_half_mirror', 'row_bcast', 'wave_'))
            self.opsel = op.startswith('v_fma_mixhi') or op.startswith('v_fma_mixlo') or 'sdwa' in op or 'dst_sel' in rest
            self.rdlane = op.startswith('v_readlane') or op.startswith('v_readfirstlane')
            self.perml = op.startswith('v_permlane')
            return
        if op.startswith('s_'):
            self.kind = 'salu'
            if op.startswith('s_waitcnt') or op in ('s_barrier', 's_endpgm', 's_branch', 's_setprio', 's_sleep') or op.startswith('s_cbranch'):
                self.kind = 'ctrl'; return
            if op.startswith('s_cmp'):
                self.src = regs_of(rest); self.dst = [('scc', 0)]; return
            if op.startswith('s_load') or op.startswith('s_buffer_load'):
                self.kind = 'smem'
            self.dst = regs_of(ops[0]); self.src = regs_of(','.join(ops[1:]))
            return
        if op.startswith('global_') or op.startswith('buffer_'):
            self.kind = 'vmem'
            if 'lds' in op or rest.endswith(' lds') or ' lds ' in rest:
                self.src = regs_of(rest) + [('m0', 0)]; self.ldsdma = True
            elif 'load' in op:
                self.dst = regs_of(ops[0]); self.src = regs_of(','.join(ops[1:]))
                if 'd16' in op: self.src += self.dst
            else:
                self.src = regs_of(rest)
                self.sdata = regs_of(ops[1]) if op.startswith('global_') else regs_of(ops[0])
                self.wide = ('x4' in op or 'x3' in op)
            return
        if op.startswith('ds_'):
            self.kind = 'ds'
            if 'read' in op or 'bpermute' in op or 'swizzle' in op:
                self.dst = regs_of(ops[0]); self.src = regs_of(','.join(ops[1:]))
            else:
                self.src = regs_of(rest)
            return

def need(prev, cur):
    n = 0
    pd = set(prev.dst); cs = set(cur.src); cd = set(cur.dst)
    if prev.kind == 'valu':
        vg = {r for r in pd if r[0] in 'va'}
        sg = {r for r in pd if r[0] == 's' or r[0] == 'vcc'}
        if cur.kind == 'mfma' and vg & cs: n = max(n, 2)
        if cur.kind == 'valu':
            if sg & cs: n = max(n, 4 if cur.rdlane or cur.op.startswith('v_writelane') else 2)
            if prev.trans and not cur.trans and vg & cs: n = max(n, 1)
            if cur.dpp and vg & cs: n = max(n, 2)
            if cur.rdlane and vg & cs: n = max(n, 1)
            if prev.opsel and vg & (cs | cd): n = max(n, 1)
            if cur.perml and vg & cs: n = max(n, 2)
        if cur.kind == 'vmem' and sg & cs: n = max(n, 5)
        if cur.kind == 'salu' and sg & cs: n = max(n, 1)
        if ('exec', 0) in pd: n = max(n, 5)
    if prev.kind == 'mfma':
        P = prev.passes
        t_ab = {4: 8, 8: 12}[P]; t_ov = {4: 6, 8: 10}[P]; t_war = {4: 3, 8: 7}[P]
        if cur.kind == 'mfma':
            if pd & (set(cur.srcA) | set(cur.srcB)): n = max(n, t_ab)
            if pd & set(cur.srcC):
                if not (prev.dst == cur.srcC and cur.passes == P): n = max(n, t_ov)
            elif pd & cd: n = max(n, t_ov)
        elif cur.kind in ('valu', 'vmem', 'ds'):
            if pd & (cs | cd): n = max(n, t_ab)
            if cur.kind == 'valu' and set(prev.srcC) & cd: n = max(n, t_war)
    if prev.kind == 'salu' and ('m0', 0) in pd and cur.kind in ('vmem', 'ds') and ('m0', 0) in cs: n = max(n, 1)
    if prev.kind == 'vmem' and getattr(prev, 'wide', False):
        if set(prev.sdata) & cd: n = max(n, 2)
    return n

class Asm:
    def __init__(self):
        self.lines = []
    def __call__(self, text):
        for ln in text.strip('\n').split('\n'):
            s = ln.strip()
            if not s: continue
            self.lines.append(s)
    def label(self, name, flush=True):
        self.lines.append(name + ':')
        if flush: self.lines.append('s_nop 7'); self.lines.append('s_nop 3')
    def raw(self, text):
        self.lines.append('\x00' + text)
    def finish(self):
        out = []
        hist = []
        for s in self.lines:
            if s.startswith('\x00'):
                out.append(s[1:]); hist = []; continue
            if s.startswith(';') or s.startswith('.'):
                out.append(s); continue
            if s.endswith(':'):
                out.append(s); continue
            ins = Ins(s)
            dist = 0; req = 0
            for p in reversed(hist):
                r = need(p, ins) - dist
                req = max(req, r)
                dist += p.nstates
                if dist >= 20: break
            while req > 0:
                k = min(req, 16)
                nop = Ins('s_nop %d' % (k - 1)); out.append('    ' + nop.text); hist.append(nop); req -= k
            out.append('    ' + s); hist.append(ins)
            if len(hist) > 40: hist = hist[-30:]
        return '\n'.join(out) + '\n'

def kd(name, vgpr, sgpr=96, accum=None):
    if accum is None: accum = min(256, (vgpr + 3) // 4 * 4)
    return f""".p2align 6
.amdhsa_kernel {name}
  .amdhsa_next_free_vgpr {vgpr}
  .amdhsa_next_free_sgpr {sgpr}
  .amdhsa_accum_offset {accum}
  .amdhsa_group_segment_fixed_size 0
  .amdhsa_kernarg_size 72
  .amdhsa_user_sgpr_count 2
  .amdhsa_user_sgpr_kernarg_segment_ptr 1
  .amdhsa_system_sgpr_workgroup_id_x 1
  .amdhsa_float_denorm_mode_32 3
  .amdhsa_float_denorm_mode_16_64 3
.end_amdhsa_kernel
"""
```

```python
import numpy as np
S, D, F = 2048, 640, 1536
A1, A2 = 0.25, 0.125
B1, B2 = 0.125, 0.25
G1, G2 = 0.125, 1.0
NORM = 1.0 / (2048.0 * 640.0) / (A1 * A2 * B1 * B1 * B2 * B2 * G1 * G2)

lane = np.arange(64)
LM = lane % 16
LG = lane // 16

def frag(fn):
    out = np.zeros((64, 8))
    for l in range(64):
        for j in range(8):
            out[l, j] = fn(l % 16, l // 16, j)
    return out

def cs(num, den):
    num = num % den
    c = np.cos(2 * np.pi * num / den); s = np.sin(2 * np.pi * num / den)
    if (4 * num) % den == 0:
        q = (4 * num) // den
        c, s = [(1., 0.), (0., 1.), (-1., 0.), (0., -1.)][q]
    return c, s

def A_F20():
    def fc(k1, g, jj):
        if jj >= 5 or k1 > 10: return 0.
        return A1 * cs((5 * g + jj) * k1, 20)[0]
    def fs(k1, g, jj):
        if jj >= 5 or k1 > 10: return 0.
        return -A1 * cs((5 * g + jj) * k1, 20)[1]
    return frag(fc), frag(fs)

def A_tw():
    out = np.zeros((64, 2, 4, 2))
    for l in range(64):
        k1, g = l % 16, l // 16
        for t in range(2):
            for r in range(4):
                c, s = cs((8 * g + 2 * r + t) * k1, 640)
                out[l, t, r] = (c, -s)
    return out

def A_F32():
    out = np.zeros((2, 2, 64, 8))
    for mt in range(2):
        for t in range(2):
            def f(m, g, j):
                r, c = j // 2, j % 2
                cc, ss = cs((8 * g + 2 * r + t) * (16 * mt + m), 32)
                return A2 * (cc if c == 0 else ss)
            out[mt, t] = frag(f)
    return out

def B_F64():
    out = np.zeros((4, 4, 64, 8))
    for w in range(4):
        for ks in range(4):
            def f(m, g, jj):
                j, c = jj // 2, jj % 2
                cc, ss = cs((16 * w + m) * (16 * ks + 4 * g + j), 64)
                return B1 * (cc if c == 0 else ss)
            out[w, ks] = frag(f)
    return out

def B_F32():
    out = np.zeros((2, 2, 64, 8))
    for mt in range(2):
        for ks in range(2):
            def f(m, g, jj):
                r, c = jj // 2, jj % 2
                cc, ss = cs((16 * mt + m) * (16 * ks + 4 * g + r), 32)
                return B2 * (cc if c == 0 else ss)
            out[mt, ks] = frag(f)
    return out

def B_tw():
    out = np.zeros((4, 64, 2, 4, 2))
    for w in range(4):
        for l in range(64):
            k1, g = 16 * w + l % 16, l // 16
            for mt in range(2):
                for r in range(4):
                    c, s = cs((16 * mt + 4 * g + r) * k1, 2048)
                    out[w, l, mt, r] = (c, -s)
    return out

def C_F32():
    out = np.zeros((2, 2, 64, 8))
    for nt in range(2):
        for ks in range(2):
            def f(n, g, jj):
                j, c = jj // 2, jj % 2
                cc, ss = cs((2 * n + nt) * (16 * ks + 4 * g + j), 32)
                return G1 * (cc if c == 0 else -ss)
            out[nt, ks] = frag(f)
    return out

def C_tw():
    out = np.zeros((64, 2, 4, 2))
    for l in range(64):
        n, g = l % 16, l // 16
        for nt in range(2):
            for r in range(4):
                c, s = cs((2 * n + nt) * (4 * g + r), 640)
                out[l, nt, r] = (c, s)
    return out

def C_G20():
    out = np.zeros((2, 64, 8))
    for mt in range(2):
        def f(m, g, jj):
            r, c = jj // 2, jj % 2
            k1 = 4 * g + r
            gp, rp = m // 4, m % 4
            if mt == 0: n1 = 5 * gp + rp
            else:
                if rp != 0: return 0.
                n1 = 5 * gp + 4
            if k1 > 10: return 0.
            ck = 1. if k1 in (0, 10) else 2.
            cc, ss = cs(n1 * k1, 20)
            return G2 * ck * (cc if c == 0 else -ss)
        out[mt] = frag(f)
    return out
```

```python
import numpy as np, struct, sys
from asmdsl import Asm, kd
import tables as T

WS_XT, WS_YT, WS_X1, WS_XLN, WS_H, WS_X2, WS_WT, WS_W1F, WS_W2F, WS_WMAX = (
    0x000000, 0x300000, 0x600000, 0x900000, 0xC00000, 0x1200000, 0x1500000, 0x1800000, 0x1A00000, 0x1C00000)
YBLK = 11264
TA_BC, TA_BS, TA_TW, TA_F32 = 0, 1024, 2048, 6144
TB_F64, TB_F32, TB_TW = 10240, 26624, 30720
TC_F32, TC_TW, TC_G20 = 47104, 51200, 55296
TBL_SIZE = 57344

def f32bits(x): return struct.unpack('<I', struct.pack('<f', x))[0]

def build_tables():
    buf = np.zeros(TBL_SIZE // 4, np.uint32)
    def put16(off, arr):
        a = np.ascontiguousarray(arr.astype(np.float16)).view(np.uint32).ravel()
        buf[off // 4: off // 4 + a.size] = a
    def put_tw(off, arr):
        a = arr.astype(np.float32).reshape(64, 4, 4).transpose(1, 0, 2)
        a = np.ascontiguousarray(a).view(np.uint32).ravel()
        buf[off // 4: off // 4 + a.size] = a
    bc, bs = T.A_F20()
    put16(TA_BC, bc); put16(TA_BS, bs); put_tw(TA_TW, T.A_tw()); put16(TA_F32, T.A_F32())
    put16(TB_F64, T.B_F64()); put16(TB_F32, T.B_F32())
    tw = T.B_tw()
    for w in range(4): put_tw(TB_TW + 4096 * w, tw[w])
    put16(TC_F32, T.C_F32()); put_tw(TC_TW, T.C_tw()); put16(TC_G20, T.C_G20())
    return buf

def wave_sum(a, v, s):
    a(f"""
    v_add_f32 v{v}, v{v}, v{v} quad_perm:[1,0,3,2] row_mask:0xf bank_mask:0xf
    v_add_f32 v{v}, v{v}, v{v} quad_perm:[2,3,0,1] row_mask:0xf bank_mask:0xf
    v_add_f32 v{v}, v{v}, v{v} row_half_mirror row_mask:0xf bank_mask:0xf
    v_add_f32 v{v}, v{v}, v{v} row_mirror row_mask:0xf bank_mask:0xf
    v_add_f32 v{v}, v{v}, v{v} row_bcast:15 row_mask:0xa bank_mask:0xf
    v_add_f32 v{v}, v{v}, v{v} row_bcast:31 row_mask:0xc bank_mask:0xf
    v_readlane_b32 s{s}, v{v}, 63
    """)

def wave_max_u32(a, v, s):
    a(f"""
    v_max_u32 v{v}, v{v}, v{v} quad_perm:[1,0,3,2] row_mask:0xf bank_mask:0xf
    v_max_u32 v{v}, v{v}, v{v} quad_perm:[2,3,0,1] row_mask:0xf bank_mask:0xf
    v_max_u32 v{v}, v{v}, v{v} row_half_mirror row_mask:0xf bank_mask:0xf
    v_max_u32 v{v}, v{v}, v{v} row_mirror row_mask:0xf bank_mask:0xf
    v_max_u32 v{v}, v{v}, v{v} row_bcast:15 row_mask:0xa bank_mask:0xf
    v_max_u32 v{v}, v{v}, v{v} row_bcast:31 row_mask:0xc bank_mask:0xf
    v_readlane_b32 s{s}, v{v}, 63
    """)

def emit_ln(a, X, O, t, sA, sB, sMask):
    inv = f32bits(1.0 / 640.0)
    a(f"v_add_f32 v{t}, v{X}, v{X+1}")
    a(f"v_add_f32 v{t+1}, v{X+2}, v{X+3}")
    a(f"v_add_f32 v{t+2}, v{X+4}, v{X+5}")
    a(f"v_add_f32 v{t+3}, v{X+6}, v{X+7}")
    a(f"v_add_f32 v{t+4}, v{X+8}, v{X+9}")
    a(f"v_add_f32 v{t}, v{t}, v{t+1}")
    a(f"v_add_f32 v{t+2}, v{t+2}, v{t+3}")
    a(f"v_add_f32 v{t}, v{t}, v{t+4}")
    a(f"v_add_f32 v{t}, v{t}, v{t+2}")
    wave_sum(a, t, sA)
    a(f"v_mov_b32 v{t+1}, {inv:#x}")
    a(f"v_mul_f32 v{t+12}, s{sA}, v{t+1}")
    for i in range(10):
        a(f"v_sub_f32 v{t+2+i}, v{X+i}, v{t+12}")
    a(f"v_mul_f32 v{t}, v{t+2}, v{t+2}")
    a(f"v_mul_f32 v{t+13}, v{t+3}, v{t+3}")
    for i in range(2, 10, 2):
        a(f"v_fmac_f32 v{t}, v{t+2+i}, v{t+2+i}")
        a(f"v_fmac_f32 v{t+13}, v{t+3+i}, v{t+3+i}")
    a(f"v_add_f32 v{t}, v{t}, v{t+13}")
    wave_sum(a, t, sB)
    a(f"v_cvt_pk_bf16_f32 v{t+12}, v{t+12}, v{t+12}")
    a(f"v_mul_f32 v{t}, s{sB}, v{t+1}")
    a(f"v_and_b32 v{t+12}, s{sMask}, v{t+12}")
    a(f"v_cvt_pk_bf16_f32 v{t}, v{t}, v{t}")
    a(f"v_and_b32 v{t}, s{sMask}, v{t}")
    a(f"v_add_f32 v{t}, {f32bits(1e-5):#x}, v{t}")
    a(f"v_cvt_pk_bf16_f32 v{t}, v{t}, v{t}")
    a(f"v_and_b32 v{t}, s{sMask}, v{t}")
    a(f"v_sqrt_f32 v{t}, v{t}")
    for i in range(10):
        a(f"v_sub_f32 v{t+2+i}, v{X+i}, v{t+12}")
    a(f"v_cvt_pk_bf16_f32 v{t}, v{t}, v{t}")
    a(f"v_and_b32 v{t}, s{sMask}, v{t}")
    a(f"v_rcp_f32 v{t}, v{t}")
    for j in range(5):
        a(f"v_cvt_pk_bf16_f32 v{O+j}, v{t+2+2*j}, v{t+3+2*j}")
    for j in range(5):
        a(f"v_lshlrev_b32 v{t+2+2*j}, 16, v{O+j}")
        a(f"v_and_b32 v{t+3+2*j}, s{sMask}, v{O+j}")
    for i in range(10):
        a(f"v_mul_f32 v{t+2+i}, v{t+2+i}, v{t}")
    for j in range(5):
        a(f"v_cvt_pk_bf16_f32 v{O+j}, v{t+2+2*j}, v{t+3+2*j}")

def cmul_pack(a, n, dst, re, im, tw, tmp, conj=False):
    for p in range(n):
        a(f"v_mul_f32 v{tmp+2*p}, v{im+p}, v{tw+2*p+1}")
        a(f"v_mul_f32 v{tmp+2*p+1}, v{im+p}, v{tw+2*p}")
    for p in range(n):
        a(f"v_fma_mixlo_f16 v{dst+p}, v{re+p}, v{tw+2*p}, -v{tmp+2*p}")
    for p in range(n):
        if conj: a(f"v_fma_mixhi_f16 v{dst+p}, -v{re+p}, v{tw+2*p+1}, -v{tmp+2*p+1}")
        else:    a(f"v_fma_mixhi_f16 v{dst+p}, v{re+p}, v{tw+2*p+1}, v{tmp+2*p+1}")

def rot(a, n, dst, src, sC):
    for p in range(n):
        a(f"v_pk_mul_f16 v{dst+p}, v{src+p}, s{sC} op_sel:[1,0] op_sel_hi:[0,1]")

def mfma(a, d, x, y, c, dt='f16', pd='v', px='v', py='v'):
    cc = '0' if c is None else f"{pd}[{c}:{c+3}]"
    a(f"v_mfma_f32_16x16x32_{dt} {pd}[{d}:{d+3}], {px}[{x}:{x+3}], {py}[{y}:{y+3}], {cc}")

def tbl_base(a, s, off, uid):
    a(f"s_getpc_b64 s[{s}:{s+1}]")
    a.lines.append(f".Lpc_{uid}:")
    a(f"s_add_u32 s{s}, s{s}, cdna_tbl-.Lpc_{uid}+{off}")
    a(f"s_addc_u32 s{s+1}, s{s+1}, 0")

def add64(a, d, s, imm):
    a(f"s_add_u32 s{d}, s{s}, {imm:#x}")
    a(f"s_addc_u32 s{d+1}, s{s+1}, 0")

def kstart(a, name):
    a.raw(f".globl {name}\n.p2align 8\n.type {name},@function\n{name}:")

def load_wscale(a, vtmp, vlane16, sws, sE, sS):
    add64(a, sE, sws, WS_WMAX)
    a(f"global_load_dwordx4 v[{vtmp}:{vtmp+3}], v{vlane16}, s[{sE}:{sE+1}]")
    a(f"global_load_dwordx4 v[{vtmp+4}:{vtmp+7}], v{vlane16}, s[{sE}:{sE+1}] offset:1024")

def finish_wscale(a, vtmp, sE):
    a(f"v_max3_u32 v{vtmp}, v{vtmp}, v{vtmp+1}, v{vtmp+2}")
    a(f"v_max3_u32 v{vtmp+3}, v{vtmp+3}, v{vtmp+4}, v{vtmp+5}")
    a(f"v_max3_u32 v{vtmp}, v{vtmp}, v{vtmp+6}, v{vtmp+7}")
    a(f"v_max_u32 v{vtmp}, v{vtmp}, v{vtmp+3}")
    wave_max_u32(a, vtmp, sE)
    a(f"s_lshr_b32 s{sE}, s{sE}, 7")
    a(f"s_min_u32 s{sE}, s{sE}, 252")

NPREP_A = 64
def kernel_A(a):
    kstart(a, "a1_kernel")
    a("""
    s_load_dwordx2 s[6:7], s[0:1], 64
    s_load_dwordx2 s[4:5], s[0:1], 0
    s_cmp_ge_u32 s2, 256
    s_cbranch_scc1 L_prepW
    s_waitcnt lgkmcnt(0)
    s_branch L_A_main
    """)
    kstart(a, "a2_kernel")
    a("""
    s_load_dwordx2 s[6:7], s[0:1], 64
    s_cmp_ge_u32 s2, 256
    s_cbranch_scc1 L_A_end
    s_waitcnt lgkmcnt(0)
    """)
    add64(a, 4, 6, WS_X2)
    a.label("L_A_main", flush=False)
    L = 8; X = 14; O = 24; TMP = 30; BC = 48; BS = 52; TW = 56; F32 = 72; AF = 88; D1R = 96; D1I = 104
    YF = 112; YR = 120; D2R = 128; D2I = 136; OUT = 144
    a("""
    v_lshrrev_b32 v1, 6, v0
    v_and_b32 v2, 63, v0
    v_readfirstlane_b32 s10, v1
    v_and_b32 v3, 15, v2
    v_lshrrev_b32 v4, 4, v2
    s_lshr_b32 s11, s2, 5
    s_and_b32 s12, s2, 31
    s_lshl_b32 s13, s11, 8
    s_lshl_b32 s14, s10, 5
    s_add_u32 s13, s13, s14
    s_add_u32 s13, s13, s12
    s_mul_i32 s13, s13, 1280
    s_add_u32 s4, s4, s13
    s_addc_u32 s5, s5, 0
    v_mul_u32_u24 v5, 320, v4
    v_lshl_add_u32 v5, v3, 2, v5
    v_lshlrev_b32 v6, 4, v2
    """)
    for j in range(5):
        a(f"global_load_dword v{L+j}, v5, s[4:5] offset:{64*j}")
    tbl_base(a, 8, 0, "A")
    a(f"global_load_dwordx4 v[{BC}:{BC+3}], v6, s[8:9] offset:{TA_BC}")
    a(f"global_load_dwordx4 v[{BS}:{BS+3}], v6, s[8:9] offset:{TA_BS}")
    add64(a, 8, 8, TA_TW)
    for q in range(4):
        a(f"global_load_dwordx4 v[{TW+4*q}:{TW+4*q+3}], v6, s[8:9] offset:{1024*q}")
    add64(a, 8, 8, TA_F32 - TA_TW)
    for q in range(4):
        a(f"global_load_dwordx4 v[{F32+4*q}:{F32+4*q+3}], v6, s[8:9] offset:{1024*q}")
    a("s_mov_b32 s16, 0xffff0000")
    a("s_mov_b32 s17, 0xbc003c00")
    a("""
    s_lshr_b32 s18, s10, 2
    s_mul_i32 s18, s18, 5136
    s_and_b32 s19, s10, 3
    s_lshl_b32 s19, s19, 2
    s_add_u32 s18, s18, s19
    v_mul_u32_u24 v7, 80, v4
    v_add_u32 v7, v7, v3
    v_lshl_add_u32 v44, v7, 4, s18
    v_sub_u32 v7, 260, v7
    v_lshl_add_u32 v45, v7, 4, s18
    v_mov_b32 v{AF+3}, 0
    v_mov_b32 v{AF+7}, 0
    """.replace("{AF+3}", str(AF + 3)).replace("{AF+7}", str(AF + 7)))
    a("s_waitcnt vmcnt(10)")
    for j in range(5):
        a(f"v_lshlrev_b32 v{X+2*j}, 16, v{L+j}")
        a(f"v_and_b32 v{X+2*j+1}, s16, v{L+j}")
    emit_ln(a, X, O, TMP, 20, 21, 16)
    for j in range(5):
        a(f"v_lshlrev_b32 v{X+2*j}, 16, v{O+j}")
        a(f"v_and_b32 v{X+2*j+1}, s16, v{O+j}")
    for t in range(2):
        a(f"v_cvt_pk_f16_f32 v{AF+4*t}, v{X+t}, v{X+2+t}")
        a(f"v_cvt_pk_f16_f32 v{AF+4*t+1}, v{X+4+t}, v{X+6+t}")
        a(f"v_cvt_pk_f16_f32 v{AF+4*t+2}, v{X+8+t}, 0")
    a("s_waitcnt vmcnt(8)")
    for t in range(2):
        mfma(a, D1R + 4 * t, AF + 4 * t, BC, None)
        mfma(a, D1I + 4 * t, AF + 4 * t, BS, None)
    a("s_waitcnt vmcnt(4)")
    cmul_pack(a, 8, YF, D1R, D1I, TW, TMP - 16)
    rot(a, 8, YR, YF, 17)
    a("s_waitcnt vmcnt(0)")
    for mt in range(2):
        mfma(a, D2R + 4 * mt, F32 + 8 * mt, YF, None)
        mfma(a, D2I + 4 * mt, F32 + 8 * mt, YR, None)
    for mt in range(2):
        mfma(a, D2R + 4 * mt, F32 + 8 * mt + 4, YF + 4, D2R + 4 * mt)
        mfma(a, D2I + 4 * mt, F32 + 8 * mt + 4, YR + 4, D2I + 4 * mt)
    for r in range(4):
        a(f"v_cvt_pk_f16_f32 v{OUT+r}, v{D2R+r}, v{D2I+r}")
    for r in range(4):
        a(f"v_cvt_pk_f16_f32 v{OUT+4+r}, v{D2R+4+r}, -v{D2I+4+r}")
    a("s_mov_b32 exec_lo, 0x07ff07ff\ns_mov_b32 exec_hi, 0x07ff07ff")
    for r in range(4):
        a(f"ds_write_b32 v44, v{OUT+r} offset:{320*r}")
    a("s_mov_b32 exec_lo, 0x03fe03ff\ns_mov_b32 exec_hi, 0x03fe03fe")
    a(f"ds_write_b32 v45, v{OUT+4} offset:{320*3}")
    a("s_mov_b32 exec_lo, 0x03fe03fe")
    for r in range(1, 4):
        a(f"ds_write_b32 v45, v{OUT+4+r} offset:{320*(3-r)}")
    a("s_mov_b64 exec, -1")
    a(f"""
    v_lshrrev_b32 v7, 1, v0
    v_and_b32 v8, 1, v0
    v_mul_u32_u24 v9, 5136, v8
    v_lshl_add_u32 v9, v7, 4, v9
    v_lshlrev_b32 v10, 13, v7
    v_lshl_add_u32 v10, v8, 4, v10
    s_lshl_b32 s13, s11, 10
    s_lshl_b32 s14, s12, 5
    s_add_u32 s13, s13, s14
    s_add_u32 s13, s13, {WS_XT:#x}
    s_add_u32 s6, s6, s13
    s_addc_u32 s7, s7, 0
    s_add_u32 s22, s6, 0x200000
    s_addc_u32 s23, s7, 0
    s_waitcnt lgkmcnt(0)
    s_barrier
    ds_read_b128 v[12:15], v9
    v_cmp_gt_u32 vcc, 130, v0
    s_and_saveexec_b64 s[24:25], vcc
    ds_read_b128 v[16:19], v9 offset:4096
    s_mov_b64 exec, s[24:25]
    s_waitcnt lgkmcnt(0)
    global_store_dwordx4 v10, v[12:15], s[6:7]
    s_and_b64 exec, exec, vcc
    s_cbranch_execz L_A_end
    s_waitcnt lgkmcnt(0)
    global_store_dwordx4 v10, v[16:19], s[22:23]
    """)
    a.label("L_A_end", flush=False)
    a("s_endpgm")
    a.label("L_prepW", flush=False)
    a(f"""
    s_cmp_ge_u32 s2, {256+NPREP_A}
    s_cbranch_scc1 L_A_end
    s_load_dwordx2 s[8:9], s[0:1], 8
    s_load_dwordx2 s[10:11], s[0:1], 16
    v_lshrrev_b32 v1, 6, v0
    v_and_b32 v2, 63, v0
    s_nop 0
    v_readfirstlane_b32 s12, v1
    s_sub_u32 s13, s2, 256
    s_lshl_b32 s13, s13, 3
    s_add_u32 s13, s13, s12
    v_mov_b32 v20, 0
    s_mov_b32 s24, 0x7fff7fff
    s_waitcnt lgkmcnt(0)
    """)
    add64(a, 14, 6, WS_WT)
    a("s_mov_b32 s15x, 0".replace("s15x", "s26"))
    a("s_mov_b32 s27, s13")
    a.label("L_pw_loop")
    a("""
    s_cmp_ge_u32 s27, 1280
    s_cbranch_scc1 L_pw_col320
    s_lshr_b32 s16, s27, 8
    s_bfe_u32 s17, s27, 0x60002
    s_and_b32 s18, s27, 3
    s_lshl_b32 s19, s18, 8
    s_add_u32 s19, s19, s17
    s_mul_i32 s19, s19, 642
    s_lshl_b32 s20, s16, 7
    s_add_u32 s19, s19, s20
    v_lshl_add_u32 v3, v2, 1, s19
    v_add_u32 v4, 0xa080, v3
    v_add_u32 v5, 0x14100, v3
    v_add_u32 v6, 0x1e180, v3
    """)
    a("s_add_u32 s28, s8, 657408\ns_addc_u32 s29, s9, 0\ns_add_u32 s30, s10, 657408\ns_addc_u32 s31, s11, 0")
    for mt in range(2):
        for r in range(4):
            a(f"global_load_ushort v{8+4*mt+r}, v{3+r}, s[{8 if mt==0 else 28}:{9 if mt==0 else 29}]")
            a(f"global_load_ushort v{32+4*mt+r}, v{3+r}, s[{10 if mt==0 else 30}:{11 if mt==0 else 31}]")
    a("""
    s_lshl_b32 s20, s16, 19
    s_lshr_b32 s21, s17, 4
    s_lshl_b32 s21, s21, 11
    s_add_u32 s20, s20, s21
    s_and_b32 s21, s17, 15
    s_lshl_b32 s22, s18, 4
    s_add_u32 s21, s21, s22
    s_lshl_b32 s21, s21, 5
    s_add_u32 s20, s20, s21
    v_lshl_add_u32 v7, v2, 13, s20
    s_waitcnt vmcnt(0)
    v_lshl_or_b32 v8, v32, 16, v8
    v_lshl_or_b32 v9, v33, 16, v9
    v_lshl_or_b32 v10, v34, 16, v10
    v_lshl_or_b32 v11, v35, 16, v11
    v_lshl_or_b32 v12, v36, 16, v12
    v_lshl_or_b32 v13, v37, 16, v13
    v_lshl_or_b32 v14, v38, 16, v14
    v_lshl_or_b32 v15, v39, 16, v15
    global_store_dwordx4 v7, v[8:11], s[14:15]
    global_store_dwordx4 v7, v[12:15], s[14:15] offset:16
    """)
    for i in range(8):
        a(f"v_and_b32 v{21+i}, s24, v{8+i}")
    for i in range(8):
        a(f"v_pk_max_u16 v20, v20, v{21+i}")
    a("""
    s_add_u32 s27, s27, 512
    s_branch L_pw_loop
    """)
    a.label("L_pw_col320")
    a("""
    s_sub_u32 s16, s13, 256
    s_cmp_ge_u32 s16, 4
    s_cbranch_scc1 L_pw_fin
    v_and_b32 v3, 15, v2
    v_lshrrev_b32 v4, 4, v2
    v_lshlrev_b32 v4, 8, v4
    v_add_u32 v3, v3, v4
    s_lshl_b32 s17, s16, 4
    v_add_u32 v3, s17, v3
    v_mul_u32_u24 v3, 642, v3
    v_add_u32 v3, 640, v3
    v_add_u32 v4, 0xa080, v3
    v_add_u32 v5, 0x14100, v3
    v_add_u32 v6, 0x1e180, v3
    s_add_u32 s28, s8, 657408
    s_addc_u32 s29, s9, 0
    s_add_u32 s30, s10, 657408
    s_addc_u32 s31, s11, 0
    """)
    for mt in range(2):
        for r in range(4):
            a(f"global_load_ushort v{8+4*mt+r}, v{3+r}, s[{8 if mt==0 else 28}:{9 if mt==0 else 29}]")
            a(f"global_load_ushort v{32+4*mt+r}, v{3+r}, s[{10 if mt==0 else 30}:{11 if mt==0 else 31}]")
    a(f"""
    s_lshl_b32 s17, s16, 11
    s_add_u32 s17, s17, {320*8192}
    v_lshl_add_u32 v7, v2, 5, s17
    s_waitcnt vmcnt(0)
    v_lshl_or_b32 v8, v32, 16, v8
    v_lshl_or_b32 v9, v33, 16, v9
    v_lshl_or_b32 v10, v34, 16, v10
    v_lshl_or_b32 v11, v35, 16, v11
    v_lshl_or_b32 v12, v36, 16, v12
    v_lshl_or_b32 v13, v37, 16, v13
    v_lshl_or_b32 v14, v38, 16, v14
    v_lshl_or_b32 v15, v39, 16, v15
    global_store_dwordx4 v7, v[8:11], s[14:15]
    global_store_dwordx4 v7, v[12:15], s[14:15] offset:16
    """)
    for i in range(8):
        a(f"v_and_b32 v{21+i}, s24, v{8+i}")
    for i in range(8):
        a(f"v_pk_max_u16 v20, v20, v{21+i}")
    a.label("L_pw_fin")
    a("""
    v_lshrrev_b32 v21, 16, v20
    v_and_b32 v20, 0xffff, v20
    v_max_u32 v20, v20, v21
    """)
    wave_max_u32(a, 20, 16)
    add64(a, 14, 6, WS_WMAX)
    a("""
    v_mov_b32 v3, s16
    s_lshl_b32 s17, s13, 2
    v_mov_b32 v4, s17
    s_mov_b64 exec, 1
    global_store_dword v4, v3, s[14:15]
    s_endpgm
    """)

NPREP_B = 240
def kernel_B(a):
    kstart(a, "b1_kernel")
    a("""
    s_load_dwordx2 s[6:7], s[0:1], 64
    s_cmp_ge_u32 s2, 321
    s_cbranch_scc1 L_prepF
    s_branch L_B_main
    """)
    kstart(a, "b2_kernel")
    a("""
    s_load_dwordx2 s[6:7], s[0:1], 64
    s_cmp_ge_u32 s2, 321
    s_cbranch_scc1 L_B_end
    """)
    a.label("L_B_main", flush=False)
    DF = 16; DR = 48; F64 = 80; F32 = 96; TW = 112; WW = 128; WM = 136; D1R = 144; D1I = 152; TMP = 160; YF = 176; YR = 184
    WF = 192
    a("""
    v_lshrrev_b32 v1, 6, v0
    v_and_b32 v2, 63, v0
    v_readfirstlane_b32 s10, v1
    v_and_b32 v3, 15, v2
    v_lshrrev_b32 v4, 4, v2
    v_lshlrev_b32 v6, 4, v2
    v_lshrrev_b32 v7, 1, v4
    v_and_b32 v8, 1, v4
    v_lshlrev_b32 v5, 10, v7
    v_lshl_add_u32 v5, v3, 5, v5
    v_lshl_add_u32 v5, v8, 4, v5
    s_lshl_b32 s11, s2, 13
    s_waitcnt lgkmcnt(0)
    s_add_u32 s4, s6, s11
    s_addc_u32 s5, s7, 0
    """)
    add64(a, 12, 4, 4096)
    for ks in range(4):
        for mt in range(2):
            base = 4 if ks < 2 else 12
            a(f"global_load_dwordx4 v[{DF+16*mt+4*ks}:{DF+16*mt+4*ks+3}], v5, s[{base}:{base+1}] offset:{2048*(ks%2)+512*mt}")
    tbl_base(a, 8, TB_F64, "B")
    a("s_lshl_b32 s14, s10, 12\ns_add_u32 s16, s8, s14\ns_addc_u32 s17, s9, 0")
    for ks in range(4):
        a(f"global_load_dwordx4 v[{F64+4*ks}:{F64+4*ks+3}], v6, s[16:17] offset:{1024*ks}")
    add64(a, 16, 16, TB_TW - TB_F64)
    for q in range(4):
        a(f"global_load_dwordx4 v[{TW+4*q}:{TW+4*q+3}], v6, s[16:17] offset:{1024*q}")
    add64(a, 8, 8, TB_F32 - TB_F64)
    for q in range(4):
        a(f"global_load_dwordx4 v[{F32+4*q}:{F32+4*q+3}], v6, s[8:9] offset:{1024*q}")
    load_wscale(a, WM, 6, 6, 18, None)
    a(f"""
    s_lshl_b32 s14, s10, 11
    s_add_u32 s14, s14, s11
    s_add_u32 s14, s14, {WS_WT:#x}
    s_add_u32 s20, s6, s14
    s_addc_u32 s21, s7, 0
    v_lshlrev_b32 v9, 5, v2
    global_load_dwordx4 v[{WW}:{WW+3}], v9, s[20:21]
    global_load_dwordx4 v[{WW+4}:{WW+7}], v9, s[20:21] offset:16
    s_mov_b32 s22, 0xffff0000
    s_mov_b32 s23, 0xbc003c00
    """)
    a("""
    s_mul_i32 s24, s2, 3277
    s_lshr_b32 s24, s24, 16
    s_mul_i32 s25, s24, 20
    s_sub_u32 s25, s2, s25
    s_sub_u32 s26, 640, s2
    s_mul_i32 s27, s26, 3277
    s_lshr_b32 s27, s27, 16
    s_mul_i32 s28, s27, 20
    s_sub_u32 s28, s26, s28
    """)
    for (k2, k1, dst) in ((24, 25, 30), (27, 28, 31)):
        a(f"""
        s_and_b32 s29, s{k2}, 16
        s_and_b32 s32, s{k2}, 3
        s_lshl_b32 s32, s32, 2
        s_add_u32 s29, s29, s32
        s_bfe_u32 s32, s{k2}, 0x20002
        s_add_u32 s29, s29, s32
        s_mul_i32 s29, s29, 11
        s_add_u32 s29, s29, s{k1}
        s_lshl_b32 s{dst}, s29, 4
        """)
    a(f"""
    s_lshl_b32 s29, s10, 6
    v_lshl_add_u32 v10, v7, 5, v3
    v_add_u32 v10, s29, v10
    v_mul_u32_u24 v10, {YBLK}, v10
    v_mul_u32_u24 v11, {32*11*16}, v8
    v_add_u32 v10, v10, v11
    """)
    a(f"""
    v_mul_u32_u24 v12, {4*68*4}, v4
    v_lshl_add_u32 v12, v3, 2, v12
    s_lshl_b32 s29, s10, 6
    v_add_u32 v12, s29, v12
    v_mul_u32_u24 v13, {68*4}, v3
    v_lshl_add_u32 v13, v4, 4, v13
    """)
    a("s_waitcnt vmcnt(16)")
    rot(a, 32, DR, DF, 23)
    a("s_waitcnt vmcnt(12)")
    for ks in range(4):
        for mt in range(2):
            mfma(a, D1R + 4 * mt, DF + 16 * mt + 4 * ks, F64 + 4 * ks, None if ks == 0 else D1R + 4 * mt)
            mfma(a, D1I + 4 * mt, DR + 16 * mt + 4 * ks, F64 + 4 * ks, None if ks == 0 else D1I + 4 * mt)
    a("s_waitcnt vmcnt(2)")
    finish_wscale(a, WM, 18)
    a("s_sub_u32 s19, 253, s18\ns_lshl_b32 s19, s19, 23")
    cmul_pack(a, 8, YF, D1R, D1I, TW, TMP)
    rot(a, 8, YR, YF, 23)
    for mt2 in range(2):
        mfma(a, D1R + 4 * mt2, F32 + 8 * mt2, YF, None)
        mfma(a, D1I + 4 * mt2, F32 + 8 * mt2, YR, None)
    for mt2 in range(2):
        mfma(a, D1R + 4 * mt2, F32 + 8 * mt2 + 4, YF + 4, D1R + 4 * mt2)
        mfma(a, D1I + 4 * mt2, F32 + 8 * mt2 + 4, YR + 4, D1I + 4 * mt2)
    a("s_waitcnt vmcnt(0)")
    for p in range(8):
        a(f"v_lshlrev_b32 v{WF+2*p}, 16, v{WW+p}")
        a(f"v_and_b32 v{WF+2*p+1}, s22, v{WW+p}")
    for p in range(16):
        a(f"v_mul_f32 v{WF+p}, s19, v{WF+p}")
    cmul_pack(a, 8, YF, D1R, D1I, WF, TMP, conj=True)
    rot(a, 8, YR, YF, 23)
    for mt in range(2):
        mfma(a, D1R + 4 * mt, F32 + 8 * mt, YF, None)
        mfma(a, D1I + 4 * mt, F32 + 8 * mt, YR, None)
    for mt in range(2):
        mfma(a, D1R + 4 * mt, F32 + 8 * mt + 4, YF + 4, D1R + 4 * mt)
        mfma(a, D1I + 4 * mt, F32 + 8 * mt + 4, YR + 4, D1I + 4 * mt)
    cmul_pack(a, 8, YF, D1R, D1I, TW, TMP)
    for mt in range(2):
        for r in range(4):
            a(f"ds_write_b32 v12, v{YF+4*mt+r} offset:{(16*mt+r)*68*4}")
    a("s_waitcnt lgkmcnt(0)\ns_barrier")
    for nt in range(2):
        for ks in range(4):
            a(f"ds_read_b128 v[{DF+16*nt+4*ks}:{DF+16*nt+4*ks+3}], v13 offset:{16*nt*68*4+64*ks}")
    a("s_waitcnt lgkmcnt(4)")
    rot(a, 16, DR, DF, 23)
    for ks in range(4):
        mfma(a, D1R, F64 + 4 * ks, DF + 4 * ks, None if ks == 0 else D1R)
        mfma(a, D1I, F64 + 4 * ks, DR + 4 * ks, None if ks == 0 else D1I)
    a("s_waitcnt lgkmcnt(0)")
    rot(a, 16, DR + 16, DF + 16, 23)
    for ks in range(4):
        mfma(a, D1R + 4, F64 + 4 * ks, DF + 16 + 4 * ks, None if ks == 0 else D1R + 4)
        mfma(a, D1I + 4, F64 + 4 * ks, DR + 16 + 4 * ks, None if ks == 0 else D1I + 4)
    add64(a, 4, 6, WS_YT)
    a(f"s_add_u32 s8, s4, {16*YBLK}\ns_addc_u32 s9, s5, 0")
    a("s_cmp_gt_u32 s25, 10\ns_cbranch_scc1 L_B_mirror")
    for p in range(8):
        a(f"v_cvt_pk_f16_f32 v{YF+p}, v{D1R+p}, -v{D1I+p}")
    a("v_add_u32 v11, s30, v10")
    a(f"global_store_dwordx4 v11, v[{YF}:{YF+3}], s[4:5]")
    a(f"global_store_dwordx4 v11, v[{YF+4}:{YF+7}], s[8:9]")
    a("""
    s_cmp_eq_u32 s2, 0
    s_cbranch_scc1 L_B_end
    s_cmp_eq_u32 s2, 320
    s_cbranch_scc1 L_B_end
    s_cmp_eq_u32 s25, 0
    s_cbranch_scc1 L_B_mirror
    s_cmp_lt_u32 s25, 10
    s_cbranch_scc1 L_B_end
    """)
    a.label("L_B_mirror")
    for p in range(8):
        a(f"v_cvt_pk_f16_f32 v{YR+p}, v{D1R+p}, v{D1I+p}")
    a("v_add_u32 v11, s31, v10")
    a(f"global_store_dwordx4 v11, v[{YR}:{YR+3}], s[4:5]")
    a(f"global_store_dwordx4 v11, v[{YR+4}:{YR+7}], s[8:9]")
    a.label("L_B_end", flush=False)
    a("s_endpgm")
    a.label("L_prepF", flush=False)
    a(f"""
    s_cmp_ge_u32 s2, {321+NPREP_B}
    s_cbranch_scc1 L_B_end
    s_load_dwordx2 s[8:9], s[0:1], 32
    s_load_dwordx2 s[10:11], s[0:1], 40
    v_lshrrev_b32 v1, 6, v0
    v_and_b32 v2, 63, v0
    s_nop 0
    v_readfirstlane_b32 s12, v1
    s_sub_u32 s13, s2, 321
    s_lshl_b32 s13, s13, 2
    s_add_u32 s13, s13, s12
    s_mov_b32 s24, 0x05040100
    s_mov_b32 s25, 0x07060302
    s_waitcnt lgkmcnt(0)
    """)
    a(f"""
    s_mul_i32 s14, s13, 5462
    s_lshr_b32 s14, s14, 16
    s_mul_i32 s15, s14, 12
    s_sub_u32 s15, s13, s15
    s_and_b32 s16, s14, 3
    s_lshr_b32 s17, s14, 2
    s_lshl_b32 s18, s17, 5
    s_lshl_b32 s19, s16, 3
    s_add_u32 s18, s18, s19
    s_mul_i32 s18, s18, 3072
    s_lshl_b32 s19, s15, 8
    s_add_u32 s18, s18, s19
    v_lshl_add_u32 v3, v2, 2, s18
    v_add_u32 v4, 12288, v3
    """)
    for j in range(8):
        a(f"global_load_dword v{8+j}, v{3 + j//4}, s[8:9] offset:{3072*(j%4) - (0)}".replace(f"offset:{3072*(j%4)}", f"offset:{3072*(j%4)}") if 3072*(j%4) < 4096 else
          f"global_load_dword v{8+j}, v{3 + j//4}, s[8:9] offset:{3072*(j%4)}")
    a.lines = a.lines[:-8]
    a("v_add_u32 v5, 6144, v3\nv_add_u32 v6, 18432, v3")
    for j in range(8):
        base = (3, 5, 4, 6)[j // 2]
        a(f"global_load_dword v{8+j}, v{base}, s[8:9] offset:{3072*(j%2)}")
    a(f"""
    s_mul_i32 s26, s13, 13108
    s_lshr_b32 s26, s26, 16
    s_mul_i32 s27, s26, 5
    s_sub_u32 s27, s13, s27
    s_and_b32 s28, s26, 3
    s_lshr_b32 s29, s26, 2
    s_lshl_b32 s30, s29, 5
    s_lshl_b32 s31, s28, 2
    s_add_u32 s30, s30, s31
    s_mul_i32 s30, s30, 1280
    s_lshl_b32 s31, s27, 8
    s_add_u32 s30, s30, s31
    v_lshl_add_u32 v24, v2, 2, s30
    v_add_u32 v25, {16*1280}, v24
    """)
    for j in range(8):
        a(f"global_load_dword v{28+j}, v{24 + j//4}, s[10:11] offset:{1280*(j%4)}")
    a(f"""
    s_lshl_b32 s19, s15, 7
    v_lshl_add_u32 v16, v2, 1, s19
    v_mul_u32_u24 v17, 683, v16
    v_lshrrev_b32 v17, 16, v17
    v_mul_u32_u24 v18, 96, v17
    v_sub_u32 v18, v16, v18
    v_lshrrev_b32 v18, 4, v18
    v_mul_u32_u24 v17, 120, v17
    v_add_u32 v17, v17, v18
    s_mul_i32 s19, s17, 6
    v_add_u32 v17, s19, v17
    v_lshlrev_b32 v17, 10, v17
    v_and_b32 v18, 15, v16
    v_lshl_add_u32 v17, v18, 4, v17
    s_lshl_b32 s19, s16, 8
    s_add_u32 s19, s19, {WS_W1F:#x}
    v_add_u32 v17, s19, v17
    """)
    a(f"""
    s_lshl_b32 s19, s27, 7
    v_lshl_add_u32 v36, v2, 1, s19
    v_mul_u32_u24 v37, 820, v36
    v_lshrrev_b32 v37, 16, v37
    v_mul_u32_u24 v38, 80, v37
    v_sub_u32 v38, v36, v38
    v_lshrrev_b32 v38, 4, v38
    v_mul_u32_u24 v37, 240, v37
    v_add_u32 v37, v37, v38
    s_mul_i32 s19, s29, 5
    v_add_u32 v37, s19, v37
    v_lshlrev_b32 v37, 10, v37
    v_and_b32 v38, 15, v36
    v_lshl_add_u32 v37, v38, 4, v37
    s_lshl_b32 s19, s28, 8
    s_add_u32 s19, s19, {WS_W2F:#x}
    v_add_u32 v37, s19, v37
    s_waitcnt vmcnt(8)
    """)
    for q in range(4):
        a(f"v_perm_b32 v{40+q}, v{8+2*q+1}, v{8+2*q}, s24")
        a(f"v_perm_b32 v{44+q}, v{8+2*q+1}, v{8+2*q}, s25")
    a("global_store_dwordx4 v17, v[40:43], s[6:7]")
    a("global_store_dwordx4 v17, v[44:47], s[6:7] offset:16")
    a("s_waitcnt vmcnt(2)")
    for q in range(4):
        a(f"v_perm_b32 v{48+q}, v{28+2*q+1}, v{28+2*q}, s24")
        a(f"v_perm_b32 v{52+q}, v{28+2*q+1}, v{28+2*q}, s25")
    a("global_store_dwordx4 v37, v[48:51], s[6:7]")
    a("global_store_dwordx4 v37, v[52:55], s[6:7] offset:16")
    a("s_endpgm")

def kernel_C(a):
    kstart(a, "c1_kernel")
    a("""
    s_load_dwordx2 s[6:7], s[0:1], 64
    s_load_dwordx2 s[4:5], s[0:1], 0
    s_cmp_ge_u32 s2, 256
    s_cbranch_scc1 L_C_end
    s_waitcnt lgkmcnt(0)
    s_branch L_C_main
    """)
    kstart(a, "c2_kernel")
    a("""
    s_load_dwordx2 s[6:7], s[0:1], 64
    s_cmp_ge_u32 s2, 256
    s_cbranch_scc1 L_C_end
    s_waitcnt lgkmcnt(0)
    """)
    add64(a, 4, 6, WS_X2)
    a.label("L_C_main", flush=False)
    L = 8; X = 14; O = 24; TMP = 30; F32 = 48; TW = 64; G20 = 80; WM = 88; AF = 96; AR = 104; D1R = 112; D1I = 120
    TF = 128; D2 = 136; X1P = 152
    a(f"""
    v_lshrrev_b32 v1, 6, v0
    v_and_b32 v2, 63, v0
    v_readfirstlane_b32 s10, v1
    v_and_b32 v3, 15, v2
    v_lshrrev_b32 v4, 4, v2
    v_lshlrev_b32 v6, 4, v2
    s_mul_i32 s13, s2, {YBLK}
    s_lshl_b32 s14, s10, 10
    s_add_u32 s13, s13, s14
    s_add_u32 s13, s13, {WS_YT:#x}
    s_add_u32 s26, s6, s13
    s_addc_u32 s27, s7, 0
    s_mov_b32 m0, s14
    s_nop 0
    global_load_lds_dwordx4 v6, s[26:27]
    s_cmp_ge_u32 s10, 3
    s_cbranch_scc1 L_C_nodma2
    s_add_u32 s14, s14, 8192
    s_add_u32 s26, s26, 8192
    s_addc_u32 s27, s27, 0
    s_mov_b32 m0, s14
    s_nop 0
    global_load_lds_dwordx4 v6, s[26:27]
    """)
    a.label("L_C_nodma2", flush=False)
    a("""
    s_lshr_b32 s11, s2, 5
    s_and_b32 s12, s2, 31
    s_lshl_b32 s13, s11, 8
    s_lshl_b32 s14, s10, 5
    s_add_u32 s13, s13, s14
    s_add_u32 s13, s13, s12
    s_mul_i32 s13, s13, 1280
    s_add_u32 s4, s4, s13
    s_addc_u32 s5, s5, 0
    v_mul_u32_u24 v5, 320, v4
    v_lshl_add_u32 v5, v3, 2, v5
    """)
    tbl_base(a, 8, TC_F32, "C")
    for q in range(4):
        a(f"global_load_dwordx4 v[{F32+4*q}:{F32+4*q+3}], v6, s[8:9] offset:{1024*q}")
    add64(a, 8, 8, TC_TW - TC_F32)
    for q in range(4):
        a(f"global_load_dwordx4 v[{TW+4*q}:{TW+4*q+3}], v6, s[8:9] offset:{1024*q}")
    add64(a, 8, 8, TC_G20 - TC_TW)
    for q in range(2):
        a(f"global_load_dwordx4 v[{G20+4*q}:{G20+4*q+3}], v6, s[8:9] offset:{1024*q}")
    load_wscale(a, WM, 6, 6, 18, None)
    for j in range(5):
        a(f"global_load_dword v{L+j}, v5, s[4:5] offset:{64*j}")
    a(f"""
    s_mov_b32 s16, 0xffff0000
    s_mov_b32 s17, 0xbc003c00
    s_lshr_b32 s20, s10, 2
    s_mul_i32 s20, s20, {32*11*16}
    s_and_b32 s21, s10, 3
    s_lshl_b32 s21, s21, 2
    s_add_u32 s20, s20, s21
    v_mul_u32_u24 v7, 11, v4
    v_add_u32 v7, v7, v3
    v_lshl_add_u32 v7, v7, 4, s20
    """)
    for p in range(8):
        a(f"v_mov_b32 v{AF+p}, 0")
    a("s_waitcnt vmcnt(17)\ns_barrier")
    a("s_mov_b32 exec_lo, 0x07ff07ff\ns_mov_b32 exec_hi, 0x07ff07ff")
    for ks in range(2):
        for j in range(4):
            a(f"ds_read_b32 v{AF+4*ks+j}, v7 offset:{(ks*16+j*4)*176}")
    a("s_mov_b64 exec, -1")
    a("s_waitcnt lgkmcnt(0)")
    rot(a, 8, AR, AF, 17)
    a("s_waitcnt vmcnt(13)")
    for nt in range(2):
        mfma(a, D1R + 4 * nt, AF, F32 + 8 * nt, None)
        mfma(a, D1I + 4 * nt, AR, F32 + 8 * nt, None)
    for nt in range(2):
        mfma(a, D1R + 4 * nt, AF + 4, F32 + 8 * nt + 4, D1R + 4 * nt)
        mfma(a, D1I + 4 * nt, AR + 4, F32 + 8 * nt + 4, D1I + 4 * nt)
    a("s_waitcnt vmcnt(5)")
    finish_wscale(a, WM, 18)
    a("s_add_u32 s19, s18, 1\ns_lshl_b32 s19, s19, 23")
    cmul_pack(a, 8, TF, D1R, D1I, TW, TMP)
    for nt in range(2):
        for mt in range(2):
            mfma(a, D2 + 8 * nt + 4 * mt, G20 + 4 * mt, TF + 4 * nt, None)
    a("s_waitcnt vmcnt(0)")
    for j in range(5):
        a(f"v_lshlrev_b32 v{X+2*j}, 16, v{L+j}")
        a(f"v_and_b32 v{X+2*j+1}, s16, v{L+j}")
    a(f"s_mov_b32 s22, {f32bits(T.NORM):#x}")
    for j in range(5):
        for nt in range(2):
            a(f"v_mul_f32 v{TMP+2*j+nt}, s22, v{D2+8*nt+j}")
    for i in range(10):
        a(f"v_mul_f32 v{TMP+i}, s19, v{TMP+i}")
    for j in range(5):
        a(f"v_cvt_pk_bf16_f32 v{O+j}, v{TMP+2*j}, v{TMP+2*j+1}")
    for j in range(5):
        a(f"v_lshlrev_b32 v{TMP+2*j}, 16, v{O+j}")
        a(f"v_and_b32 v{TMP+2*j+1}, s16, v{O+j}")
    for i in range(10):
        a(f"v_add_f32 v{X+i}, v{X+i}, v{TMP+i}")
    for j in range(5):
        a(f"v_cvt_pk_bf16_f32 v{X1P+j}, v{X+2*j}, v{X+2*j+1}")
    a(f"s_add_u32 s13, s13, {WS_X1:#x}\ns_add_u32 s4, s6, s13\ns_addc_u32 s5, s7, 0")
    for j in range(5):
        a(f"global_store_dword v5, v{X1P+j}, s[4:5] offset:{64*j}")
    for j in range(5):
        a(f"v_lshlrev_b32 v{X+2*j}, 16, v{X1P+j}")
        a(f"v_and_b32 v{X+2*j+1}, s16, v{X1P+j}")
    emit_ln(a, X, O, TMP, 20, 21, 16)
    a(f"""
    s_lshr_b32 s13, s2, 1
    s_mul_i32 s13, s13, 20480
    s_and_b32 s14, s2, 1
    s_lshl_b32 s14, s14, 3
    s_add_u32 s14, s14, s10
    s_lshl_b32 s14, s14, 4
    s_add_u32 s13, s13, s14
    s_add_u32 s13, s13, {WS_XLN:#x}
    s_add_u32 s4, s6, s13
    s_addc_u32 s5, s7, 0
    v_mul_u32_u24 v5, 5120, v4
    v_lshrrev_b32 v7, 2, v3
    v_lshl_add_u32 v5, v7, 8, v5
    v_and_b32 v7, 3, v3
    v_lshl_add_u32 v5, v7, 2, v5
    v_add_u32 v7, 4096, v5
    """)
    for j in range(4):
        a(f"global_store_dword v5, v{O+j}, s[4:5] offset:{1024*j}")
    a(f"global_store_dword v7, v{O+4}, s[4:5]")
    a.label("L_C_end", flush=False)
    a("s_endpgm")

def kernel_D(a):
    kstart(a, "d_kernel")
    a("""
    s_load_dwordx2 s[6:7], s[0:1], 64
    s_cmp_ge_u32 s2, 256
    s_cbranch_scc1 L_D_end
    v_lshrrev_b32 v1, 6, v0
    v_and_b32 v2, 63, v0
    v_readfirstlane_b32 s10, v1
    v_lshlrev_b32 v6, 4, v2
    s_lshr_b32 s11, s2, 4
    s_and_b32 s12, s2, 15
    """)
    XF = 64
    ACC = 0
    WFR = 16
    a(f"""
    s_mul_i32 s13, s12, 122880
    s_add_u32 s13, s13, {WS_W1F:#x}
    s_mul_i32 s14, s10, 6144
    s_add_u32 s13, s13, s14
    s_lshl_b32 s15, s11, 3
    s_lshl_b32 s16, s10, 1
    s_add_u32 s15, s15, s16
    s_mul_i32 s16, s15, 20480
    s_add_u32 s16, s16, {WS_XLN:#x}
    s_waitcnt lgkmcnt(0)
    s_add_u32 s20, s6, s13
    s_addc_u32 s21, s7, 0
    s_add_u32 s22, s6, s16
    s_addc_u32 s23, s7, 0
    s_add_u32 s24, s22, 20480
    s_addc_u32 s25, s23, 0
    """)
    for c in range(5):
        a(f"s_add_u32 s17, s14, {24576*c}\ns_mov_b32 m0, s17")
        for p in range(4):
            a(f"global_load_lds_dwordx4 v6, s[20:21] offset:{1024*p}")
        a(f"s_add_u32 s17, s17, 4096\ns_add_u32 s26, s20, 4096\ns_addc_u32 s27, s21, 0\ns_mov_b32 m0, s17")
        for p in range(2):
            a(f"global_load_lds_dwordx4 v6, s[26:27] offset:{1024*p}")
        a(f"s_add_u32 s20, s20, 24576\ns_addc_u32 s21, s21, 0")
        for kk in range(4):
            ks = 4 * c + kk
            a(f"global_load_dwordx4 v[{XF+8*ks}:{XF+8*ks+3}], v6, s[22:23] offset:{1024*kk}")
            a(f"global_load_dwordx4 v[{XF+8*ks+4}:{XF+8*ks+7}], v6, s[24:25] offset:{1024*kk}")
        a("s_add_u32 s22, s22, 4096\ns_addc_u32 s23, s23, 0\ns_add_u32 s24, s24, 4096\ns_addc_u32 s25, s25, 0")
    for i in range(48):
        a(f"v_accvgpr_write_b32 a{i}, 0")
    for c in range(5):
        a(f"s_waitcnt vmcnt({14*(4-c)})\ns_barrier")
        for kk in range(4):
            ks = 4 * c + kk
            st = WFR + 24 * (ks % 2)
            if kk == 0:
                a(f"v_add_u32 v7, {24576*c}, v6")
            for ft in range(6):
                a(f"ds_read_b128 v[{st+4*ft}:{st+4*ft+3}], v7 offset:{6144*kk+1024*ft}")
            for ft in range(6):
                a(f"s_waitcnt lgkmcnt({5-ft})")
                for rt in range(2):
                    d = ACC + 8 * ft + 4 * rt
                    mfma(a, d, st + 4 * ft, XF + 8 * ks + 4 * rt, d, dt='bf16', pd='a')
    a(f"""
    s_mov_b32 s16, 0xffff0000
    s_mov_b32 s17, {f32bits(-1.4426950408889634):#x}
    s_mul_i32 s13, s15, 49152
    s_mul_i32 s14, s12, 3072
    s_add_u32 s13, s13, s14
    s_add_u32 s13, s13, {WS_H:#x}
    s_add_u32 s20, s6, s13
    s_addc_u32 s21, s7, 0
    s_add_u32 s22, s20, 49152
    s_addc_u32 s23, s21, 0
    """)
    for rt in range(2):
        for fp in range(3):
            V = 64 + 32 * ((rt * 3 + fp) % 4)
            for h in range(2):
                ft = 2 * fp + h
                for r in range(4):
                    a(f"v_accvgpr_read_b32 v{V+4*h+r}, a{ACC+8*ft+4*rt+r}")
            for q in range(4):
                a(f"v_cvt_pk_bf16_f32 v{V+8+q}, v{V+2*q}, v{V+2*q+1}")
            for q in range(4):
                a(f"v_lshlrev_b32 v{V+2*q}, 16, v{V+8+q}")
                a(f"v_and_b32 v{V+2*q+1}, s16, v{V+8+q}")
            for i in range(8):
                a(f"v_mul_f32 v{V+8+i}, s17, v{V+i}")
            for i in range(8):
                a(f"v_exp_f32 v{V+8+i}, v{V+8+i}")
            for i in range(8):
                a(f"v_add_f32 v{V+8+i}, 1.0, v{V+8+i}")
            for i in range(8):
                a(f"v_rcp_f32 v{V+8+i}, v{V+8+i}")
            for i in range(8):
                a(f"v_mul_f32 v{V+i}, v{V+i}, v{V+8+i}")
            for q in range(4):
                a(f"v_cvt_pk_bf16_f32 v{V+16+q}, v{V+2*q}, v{V+2*q+1}")
            a(f"global_store_dwordx4 v6, v[{V+16}:{V+19}], s[{20+2*rt}:{21+2*rt}] offset:{1024*fp}")
    a.label("L_D_end", flush=False)
    a("s_endpgm")

def kernel_E(a):
    kstart(a, "e1_kernel")
    a("""
    s_load_dwordx2 s[6:7], s[0:1], 64
    s_cmp_ge_u32 s2, 256
    s_cbranch_scc1 L_E_end
    s_waitcnt lgkmcnt(0)
    """)
    add64(a, 4, 6, WS_X2)
    a("s_branch L_E_main")
    kstart(a, "e2_kernel")
    a("""
    s_load_dwordx2 s[6:7], s[0:1], 64
    s_load_dwordx2 s[4:5], s[0:1], 48
    s_cmp_ge_u32 s2, 256
    s_cbranch_scc1 L_E_end
    s_waitcnt lgkmcnt(0)
    """)
    a.label("L_E_main", flush=False)
    a("""
    v_lshrrev_b32 v1, 6, v0
    v_and_b32 v2, 63, v0
    v_readfirstlane_b32 s10, v1
    v_lshlrev_b32 v6, 4, v2
    v_and_b32 v3, 15, v2
    v_lshrrev_b32 v4, 4, v2
    s_lshr_b32 s11, s2, 3
    s_and_b32 s12, s2, 7
    """)
    for rt in range(4):
        a(f"""
        s_add_u32 s13, s10, {rt}
        s_and_b32 s13, s13, 3
        s_lshl_b32 s14, s11, 2
        s_add_u32 s13, s13, s14
        s_mul_i32 s13, s13, 49152
        s_mul_i32 s14, s10, 12288
        s_add_u32 s13, s13, s14
        s_add_u32 s13, s13, {WS_H:#x}
        s_add_u32 s{20+2*rt}, s6, s13
        s_addc_u32 s{21+2*rt}, s7, 0
        """)
    a(f"""
    s_mul_i32 s13, s12, 245760
    s_mul_i32 s14, s10, 61440
    s_add_u32 s13, s13, s14
    s_add_u32 s13, s13, {WS_W2F:#x}
    s_add_u32 s28, s6, s13
    s_addc_u32 s29, s7, 0
    """)
    NBUF = 7
    def buf(b):
        return ('v', 16 + 36 * b) if b < 6 else ('a', 80 + 36 * (b - 6))
    def issue(ks):
        p, base = buf(ks % NBUF)
        if ks > 0 and ks % 4 == 0:
            for rt in range(4):
                a(f"s_add_u32 s{20+2*rt}, s{20+2*rt}, 4096\ns_addc_u32 s{21+2*rt}, s{21+2*rt}, 0")
        for rt in range(4):
            a(f"global_load_dwordx4 {p}[{base+4*rt}:{base+4*rt+3}], v6, s[{20+2*rt}:{21+2*rt}] offset:{1024*(ks%4)}")
        for dt in range(4):
            a(f"global_load_dwordx4 {p}[{base+16+4*dt}:{base+16+4*dt+3}], v6, s[28:29] offset:{1024*dt}")
        a("s_add_u32 s28, s28, 4096\ns_addc_u32 s29, s29, 0")
        a(f"global_load_dwordx4 {p}[{base+32}:{base+35}], v6, s[28:29]")
        a("s_add_u32 s28, s28, 1024\ns_addc_u32 s29, s29, 0")
    for ks in range(NBUF):
        issue(ks)
    for i in range(80):
        a(f"v_accvgpr_write_b32 a{i}, 0")
    for ks in range(12):
        outstanding = min(12, ks + NBUF) - ks - 1
        a(f"s_waitcnt vmcnt({9*outstanding})")
        p, base = buf(ks % NBUF)
        for rt in range(4):
            for dt in range(5):
                d = 20 * rt + 4 * dt
                mfma(a, d, base + 16 + 4 * dt, base + 4 * rt, d, dt='bf16', pd='a', px=p, py=p)
        if ks + NBUF < 12:
            issue(ks + NBUF)
    a(f"""
    s_lshl_b32 s13, s11, 2
    s_add_u32 s13, s13, s10
    s_lshr_b32 s14, s13, 4
    s_lshl_b32 s14, s14, 8
    s_and_b32 s15, s13, 15
    s_lshl_b32 s15, s15, 1
    s_add_u32 s14, s14, s15
    v_and_b32 v7, 7, v3
    v_lshlrev_b32 v7, 5, v7
    v_lshrrev_b32 v8, 3, v3
    v_add3_u32 v7, v7, v8, s14
    v_mul_u32_u24 v7, 1280, v7
    v_lshl_add_u32 v7, v4, 3, v7
    s_mul_i32 s14, s12, 160
    v_add_u32 v7, s14, v7
    """)
    add64(a, 16, 6, WS_X1)
    for dt in range(5):
        a(f"global_load_dwordx2 v[{16+2*dt}:{17+2*dt}], v7, s[16:17] offset:{32*dt}")
    for rt in range(1, 4):
        a(f"""
        s_add_u32 s13, s10, {rt}
        s_and_b32 s13, s13, 3
        s_mul_i32 s13, s13, 15360
        s_add_u32 s13, s13, {5120*(rt-1)}
        v_add_u32 v{8+rt}, s13, v6
        """)
        for dt in range(5):
            a(f"ds_write_b128 v{8+rt}, a[{20*rt+4*dt}:{20*rt+4*dt+3}] offset:{1024*dt}")
    a("s_mul_i32 s13, s10, 15360\nv_add_u32 v8, s13, v6\ns_mov_b32 s18, 0xffff0000")
    a("s_waitcnt lgkmcnt(0)\ns_barrier")
    for sl in range(3):
        for dt in range(5):
            a(f"ds_read_b128 v[{32+20*sl+4*dt}:{32+20*sl+4*dt+3}], v8 offset:{5120*sl+1024*dt}")
    for i in range(20):
        a(f"v_accvgpr_read_b32 v{100+i}, a{i}")
    for sl in range(3):
        a(f"s_waitcnt lgkmcnt({10-5*sl})")
        for i in range(20):
            a(f"v_add_f32 v{100+i}, v{100+i}, v{32+20*sl+i}")
    a("s_waitcnt vmcnt(0)")
    for q in range(10):
        a(f"v_cvt_pk_bf16_f32 v{120+q}, v{100+2*q}, v{101+2*q}")
    for q in range(10):
        a(f"v_lshlrev_b32 v{100+2*q}, 16, v{120+q}")
        a(f"v_and_b32 v{101+2*q}, s18, v{120+q}")
        a(f"v_lshlrev_b32 v{130+2*q}, 16, v{16+q}")
        a(f"v_and_b32 v{131+2*q}, s18, v{16+q}")
    for i in range(20):
        a(f"v_add_f32 v{100+i}, v{100+i}, v{130+i}")
    for q in range(10):
        a(f"v_cvt_pk_bf16_f32 v{120+q}, v{100+2*q}, v{101+2*q}")
    for dt in range(5):
        a(f"global_store_dwordx2 v7, v[{120+2*dt}:{121+2*dt}], s[4:5] offset:{32*dt}")
    a.label("L_E_end", flush=False)
    a("s_endpgm")

def main(out):
    hdr = open('interleave_layers__spectral_gfnet__dense_activation_silu__prompt.s.ref').read().split('\n')
    head = [l for l in hdr if l.startswith(';') and '@launch' not in l and 'Override launch' not in l and 'grid=ceil' not in l]
    launches = [
        ("a1_kernel", 256 + NPREP_A, 512, 10368),
        ("b1_kernel", 321 + NPREP_B, 256, 8704),
        ("c1_kernel", 256, 512, YBLK),
        ("d_kernel", 256, 256, 122880),
        ("e1_kernel", 256, 256, 61440),
        ("a2_kernel", 256, 512, 10368),
        ("b2_kernel", 321, 256, 8704),
        ("c2_kernel", 256, 512, YBLK),
        ("d_kernel", 256, 256, 122880),
        ("e2_kernel", 256, 256, 61440),
    ]
    s = '\n'.join(head) + '\n'
    for (k, g, b, l) in launches:
        s += f"; @launch kernel={k} grid=({g},1,1) block=({b},1,1) lds={l}\n"
    s += '.amdgcn_target "amdgcn-amd-amdhsa--gfx950"\n.text\n'
    a = Asm()
    kernel_A(a); kernel_B(a); kernel_C(a); kernel_D(a); kernel_E(a)
    s += a.finish()
    tb = build_tables()
    s += ".p2align 8\n.type cdna_tbl,@object\ncdna_tbl:\n"
    for i in range(0, tb.size, 8):
        s += ".long " + ",".join("0x%08x" % v for v in tb[i:i + 8]) + "\n"
    s += f".size cdna_tbl, {TBL_SIZE}\n"
    s += '.section .rodata,"a"\n'
    s += kd("a1_kernel", 152) + kd("a2_kernel", 152)
    s += kd("b1_kernel", 208) + kd("b2_kernel", 208)
    s += kd("c1_kernel", 160) + kd("c2_kernel", 160)
    s += kd("d_kernel", 256 + 48, accum=256)
    s += kd("e1_kernel", 256 + 116, accum=256) + kd("e2_kernel", 256 + 116, accum=256)
    open(out, 'w').write(s)

if __name__ == "__main__":
    main(sys.argv[1] if len(sys.argv) > 1 else 'interleave_layers__spectral_gfnet__dense_activation_silu__prompt.s')
```
